```python
import torch

def _softmax(x, axis=-1):
    return torch.softmax(x, dim=axis)
def _gelu(x):
    return torch.nn.functional.gelu(x, approximate="tanh")
def _silu(x):
    return torch.nn.functional.silu(x)
def _sigmoid(x):
    return torch.sigmoid(x)
def _layernorm(x, axis=-1, eps=1e-5):
    m = x.mean(dim=axis, keepdim=True)
    v = x.var(dim=axis, keepdim=True, unbiased=False)
    return (x - m) / torch.sqrt(v + eps)
def _scatter_add(tgt, idx, src, axis=0):
    return tgt.clone().index_add_(axis, idx, src)
def _segment_sum(src, seg, n):
    out = torch.zeros((n,) + src.shape[1:], dtype=src.dtype)
    return out.index_add_(0, seg, src)
def _pad(x, pw):
    flat = tuple(v for pair in reversed(pw) for v in pair)
    return torch.nn.functional.pad(x, flat)

kernel_name = 'gated_mix__sliding_block__mixer_s_mlp__prompt'

def setup_inputs():

    _w = (lambda a: (lambda t: t.to(torch.bfloat16) if t.is_floating_point() else t)(torch.as_tensor(a)))
    def _A_setup():
        B, S, D = 1, 2048, 512
        return {
            "x": _w((lambda *s: torch.randn(*s, dtype=torch.bfloat16) * 0.05)(B, S, D)),
            "wqkv": _w((lambda *s: torch.randn(*s, dtype=torch.bfloat16) * 1.6)(D, 3 * D)),
            "wo": _w((lambda *s: torch.randn(*s, dtype=torch.bfloat16) * 0.4)(D, D)),
        }
    _A_in = _A_setup()

    def _B_setup():
        B, S, D, F = 1, 2048, 512, 1376
        return {
            "x":  _w((lambda *s: torch.randn(*s, dtype=torch.bfloat16) * 0.05)(B, S, D)),
            "w1": _w((lambda *s: torch.randn(*s, dtype=torch.bfloat16) * 3.2)(D, D) * (D ** -0.5)),
            "w2": _w((lambda *s: torch.randn(*s, dtype=torch.bfloat16) * 3.2)(D, D) * (D ** -0.5)),
            "w3": _w((lambda *s: torch.randn(*s, dtype=torch.bfloat16) * 3.2)(D, F) * (D ** -0.5)),
            "w4": _w((lambda *s: torch.randn(*s, dtype=torch.bfloat16) * 3.2)(F, D) * (F ** -0.5)),
        }
    _B_in = _B_setup()

    return {
        "A_x": _A_in["x"],
        "A_wqkv": _A_in["wqkv"],
        "A_wo": _A_in["wo"],
        "B_x": _B_in["x"],
        "B_w1": _B_in["w1"],
        "B_w2": _B_in["w2"],
        "B_w3": _B_in["w3"],
        "B_w4": _B_in["w4"],
        "gate_w": _w((lambda *s: torch.randn(*s, dtype=torch.bfloat16) * 0.05)(512) * 16.0),
    }

def reference(A_x, A_wqkv, A_wo, B_x, B_w1, B_w2, B_w3, B_w4, gate_w):
    def _A_ref(x, wqkv, wo):
        B, S, D = x.shape
        H = 32; Dh = D // H; W = 256
        qkv = (lambda x, *d: x.permute(*d))((x @ wqkv).reshape(B, S, 3, H, Dh), 2, 0, 3, 1, 4)
        q, k, v = qkv[0], qkv[1], qkv[2]
        scores = torch.einsum("bhqd,bhkd->bhqk", q, k) * (Dh ** -0.5)
        idx = torch.arange(S)
        mask = (idx[:, None] - idx[None, :] >= 0) & (idx[:, None] - idx[None, :] < W)
        scores = torch.where(mask[None, None], scores, -1e9)
        p = _softmax(scores, axis=-1)
        o = torch.einsum("bhqk,bhkd->bhqd", p, v)
        return (lambda x, *d: x.permute(*d))(o, 0, 2, 1, 3).reshape(B, S, D) @ wo

    def _B_ref(x, w1, w2, w3, w4):
        B, S, D = x.shape
        h = _gelu(_layernorm(x, axis=-1) @ w1)
        c = D // 4
        g0 = _pad(h[:, :, 0*c:1*c], ((0, 0), (1, 0), (0, 0)))[:, :S, :]
        g1 = _pad(h[:, :, 1*c:2*c], ((0, 0), (0, 1), (0, 0)))[:, 1:, :]
        g2 = _pad(h[:, :, 2*c:3*c], ((0, 0), (2, 0), (0, 0)))[:, :S, :]
        g3 = _pad(h[:, :, 3*c:   ], ((0, 0), (0, 2), (0, 0)))[:, 2:, :]
        hs = torch.concatenate([g0, g1, g2, g3], axis=-1) @ w2
        x1 = x + hs
        h2 = _gelu(_layernorm(x1, axis=-1) @ w3) @ w4
        return x1 + h2

    x = A_x
    g = _sigmoid((x * gate_w).sum(-1, keepdims=True))
    a = _A_ref(x, A_wqkv, A_wo)
    b = _B_ref(x, B_w1, B_w2, B_w3, B_w4)
    return g * a + (1 - g) * b
```

```python
import re

TRANS = ("v_exp_f32", "v_log_f32", "v_rcp_f32", "v_rsq_f32", "v_sqrt_f32", "v_sin_f32", "v_cos_f32", "v_rcp_iflag_f32")

def regs_of(tok):
    tok = tok.strip()
    tok = tok.replace("-", "", 1) if tok.startswith("-") else tok
    m = re.fullmatch(r"abs\((.*)\)", tok)
    if m: tok = m.group(1)
    m = re.fullmatch(r"\|(.*)\|", tok)
    if m: tok = m.group(1)
    m = re.fullmatch(r"([vsa])(\d+)", tok)
    if m: return {tok}
    m = re.fullmatch(r"([vsa])\[(\d+):(\d+)\]", tok)
    if m: return {f"{m.group(1)}{i}" for i in range(int(m.group(2)), int(m.group(3)) + 1)}
    if tok in ("vcc", "exec", "m0"): return {tok}
    if tok in ("vcc_lo", "vcc_hi"): return {"vcc"}
    if tok in ("exec_lo", "exec_hi"): return {"exec"}
    return set()

class Ins:
    __slots__ = ("text", "op", "cls", "defs", "uses", "srcc", "srcab", "passes", "dpp", "states", "stdata")
    def __init__(self, text):
        self.text = text
        body = text.split(";")[0].strip()
        parts = body.split(None, 1)
        op = parts[0]
        op = re.sub(r"_e(32|64)$", "", op)
        self.op = op
        rest = parts[1] if len(parts) > 1 else ""
        ops = [o.strip() for o in rest.split(",")] if rest else []
        mods = ""
        if ops:
            sp = ops[-1].split(None, 1)
            ops[-1] = sp[0]
            mods = sp[1] if len(sp) > 1 else ""
        self.defs, self.uses, self.srcc, self.srcab = set(), set(), set(), set()
        self.passes = 0; self.dpp = False; self.states = 1; self.stdata = set()
        R = [regs_of(o) for o in ops]
        if op == "s_nop":
            self.cls = "nop"; self.states = int(ops[0], 0) + 1
        elif op.startswith("v_mfma"):
            self.cls = "mfma"
            self.defs = R[0]; self.srcab = R[1] | R[2]; self.srcc = R[3]; self.uses = self.srcab | self.srcc
            self.passes = 8 if "32x32x16" in op else (4 if "16x16x32" in op or "16x16x16" in op else (2 if "4x4x4" in op else 16))
        elif op.startswith("v_"):
            self.cls = "trans" if op in TRANS else "valu"
            if op.startswith("v_cmp"):
                self.defs = R[0]; self.uses = set().union(*R[1:])
            elif op.startswith("v_permlane") and "swap" in op:
                self.defs = R[0] | R[1]; self.uses = R[0] | R[1]
            elif op in ("v_add_co_u32", "v_sub_co_u32", "v_addc_co_u32", "v_subb_co_u32"):
                self.defs = R[0] | R[1]; self.uses = set().union(*R[2:])
            else:
                self.defs = R[0]; self.uses = set().union(*R[1:]) if len(R) > 1 else set()
                if op in ("v_fmac_f32", "v_dot2c_f32_bf16", "v_writelane_b32", "v_pk_fmac_f16") or "bound_ctrl" in mods or "row_mask" in mods:
                    self.uses |= R[0]
            if "quad_perm" in mods or "row_" in mods or op.endswith("_dpp"):
                self.dpp = True
        elif op.startswith("buffer_") or op.startswith("global_"):
            self.cls = "vmem"
            lds = re.search(r"\blds\b", mods) is not None or "_lds_" in op
            if op in ("buffer_inv", "buffer_wbl2"):
                pass
            elif lds:
                self.uses = set().union(*R) | {"m0"}
                self.cls = "dma"
            elif "_load" in op:
                self.defs = R[0]; self.uses = set().union(*R[1:])
            elif "_store" in op:
                self.uses = set().union(*R)
                if op.endswith("x4") or op.endswith("x3"):
                    self.stdata = R[0] if op.startswith("buffer_") else R[1]
            else:
                self.uses = set().union(*R)
                if "sc0" in mods: self.defs = R[0]
        elif op.startswith("ds_"):
            self.cls = "ds"
            if "read" in op or "permute" in op or "swizzle" in op or "_rtn" in op:
                self.defs = R[0]; self.uses = set().union(*R[1:])
            else:
                self.uses = set().union(*R)
        elif op.startswith("s_load") or op.startswith("s_buffer_load") or op in ("s_memtime", "s_memrealtime"):
            self.cls = "smem"; self.defs = R[0]; self.uses = set().union(*R[1:]) if len(R) > 1 else set()
        elif op.startswith("s_"):
            self.cls = "salu"
            if op.startswith("s_cmp") or op.startswith("s_cbranch") or op in ("s_branch", "s_barrier", "s_waitcnt", "s_endpgm", "s_sleep", "s_setprio", "s_bitcmp0_b32", "s_bitcmp1_b32"):
                self.uses = set().union(*R) if R else set()
            else:
                self.defs = R[0] if R else set(); self.uses = set().union(*R[1:]) if len(R) > 1 else set()
                if "saveexec" in op: self.defs |= {"exec"}
        else:
            raise ValueError("unknown instruction: " + text)

def need(p, c):
    n = 0
    pv = p.cls in ("valu", "trans")
    cv = c.cls in ("valu", "trans")
    vdefs = {r for r in p.defs if r[0] in "va" and r != "vcc"}
    sdefs = p.defs - vdefs
    if pv:
        if c.cls == "mfma" and vdefs & c.uses: n = max(n, 2)
        if p.cls == "trans" and c.cls in ("valu",) and vdefs & c.uses: n = max(n, 1)
        if c.op.startswith("v_permlane") and vdefs & c.uses: n = max(n, 2)
        if c.op in ("v_readfirstlane_b32", "v_readlane_b32") and vdefs & c.uses: n = max(n, 1)
        if c.dpp and vdefs & c.uses: n = max(n, 2)
        if sdefs:
            if cv and sdefs & c.uses: n = max(n, 4 if c.op in ("v_readlane_b32", "v_writelane_b32") else 2)
            if c.cls in ("vmem", "dma") and sdefs & c.uses: n = max(n, 5)
            if c.cls == "salu" and sdefs & c.uses: n = max(n, 1)
            if c.op in ("s_cbranch_vccz", "s_cbranch_vccnz") and "vcc" in sdefs: n = max(n, 1)
            if "exec" in sdefs: n = max(n, 5)
    if p.op.startswith("v_dot2"):
        if vdefs & (c.uses | c.defs):
            same = (c.op == p.op)
            if same:
                ops = [o.strip() for o in c.text.split(None, 1)[1].split(",")]
                ab = regs_of(ops[1]) | regs_of(ops[2].split()[0])
                if vdefs & ab: n = max(n, 3)
            else:
                n = max(n, 3)
    if p.cls == "mfma":
        P = p.passes
        t_c = {2: 4, 4: 6, 8: 10, 16: 18}[P]
        t_ab = {2: 5, 4: 8, 8: 12, 16: 20}[P]
        t_war = {2: 1, 4: 3, 8: 7, 16: 15}[P]
        if c.cls == "mfma":
            if p.defs & c.srcab: n = max(n, t_ab)
            if p.defs & c.srcc:
                if p.defs == c.srcc and c.passes == P: n = max(n, 2 if P == 2 else 0)
                else: n = max(n, t_c)
            elif p.defs & c.defs: n = max(n, t_c)
        elif cv or c.cls in ("vmem", "dma", "ds"):
            if p.defs & (c.uses | c.defs): n = max(n, t_ab)
            if p.srcc & c.defs: n = max(n, t_war)
    if p.cls == "salu" and "m0" in p.defs and c.cls == "dma": n = max(n, 1)
    if p.stdata and (p.stdata & c.defs): n = max(n, 2)
    return n

class Em:
    def __init__(self):
        self.out = []
        self.hist = []
        self.vm = []
        self.lg = []
        self.uid = 0
        self.nnop = 0
    def raw(self, s):
        self.out.append(s)
    def label(self, name):
        self.out.append(name + ":")
    def newlabel(self, base):
        self.uid += 1
        return f"{base}_{self.uid}"
    def fence(self):
        worst = 0; dist = 0
        for p in reversed(self.hist):
            w = 0
            if p.cls == "mfma": w = {2: 5, 4: 8, 8: 12, 16: 20}[p.passes]
            elif p.cls in ("valu", "trans"): w = 5 if any(r[0] == "s" or r in ("vcc", "exec") for r in p.defs) else 3
            elif p.stdata: w = 2
            elif p.cls == "salu" and "m0" in p.defs: w = 1
            worst = max(worst, w - dist)
            dist += p.states
            if dist > 24: break
        self._nop(worst)
    def _nop(self, n):
        while n > 0:
            k = min(n, 16)
            i = Ins(f"s_nop {k-1}")
            self.out.append("    " + i.text); self.hist.append(i); self.nnop += 1
            n -= k
    def __call__(self, text, tag=None):
        for l in text.split("\n"):
            l = l.strip()
            if not l: continue
            if l.startswith(";") or l.startswith("."):
                self.out.append(l); continue
            if l.endswith(":"):
                self.out.append(l); continue
            c = Ins(l)
            dist = 0; pad = 0
            for p in reversed(self.hist):
                pad = max(pad, need(p, c) - dist)
                dist += p.states
                if dist > 24: break
            self._nop(pad)
            self.out.append("    " + l)
            self.hist.append(c)
            if len(self.hist) > 64: self.hist = self.hist[-40:]
            if c.cls in ("vmem", "dma"): self.vm.append(tag)
            if c.cls == "ds": self.lg.append(tag)
    def _cnt(self, q, tags):
        if not isinstance(tags, (list, tuple, set)): tags = [tags]
        last = -1
        for i, t in enumerate(q):
            if t in tags: last = i
        return last
    def wait(self, vm=None, lg=None):
        parts = []
        if vm is not None:
            last = len(self.vm) - 1 if vm == "all" else self._cnt(self.vm, vm)
            if last >= 0:
                n = len(self.vm) - 1 - last
                if n <= 63: parts.append(f"vmcnt({n})")
                else: parts.append("vmcnt(63)")
                self.vm = self.vm[last + 1:]
        if lg is not None:
            last = len(self.lg) - 1 if lg == "all" else self._cnt(self.lg, lg)
            if last >= 0:
                n = len(self.lg) - 1 - last
                parts.append(f"lgkmcnt({min(n, 15)})")
                self.lg = self.lg[last + 1:]
        if parts: self("s_waitcnt " + " ".join(parts))
    def text(self):
        return "\n".join(self.out) + "\n"

def v(i, n=1): return f"v{i}" if n == 1 else f"v[{i}:{i+n-1}]"
def s(i, n=1): return f"s{i}" if n == 1 else f"s[{i}:{i+n-1}]"

def kd(name, vgpr, sgpr=96):
    accum = (vgpr + 3) // 4 * 4
    return f""".p2align 6
.amdhsa_kernel {name}
  .amdhsa_next_free_vgpr {vgpr}
  .amdhsa_next_free_sgpr {sgpr}
  .amdhsa_accum_offset {accum}
  .amdhsa_group_segment_fixed_size 0
  .amdhsa_kernarg_size 96
  .amdhsa_user_sgpr_count 2
  .amdhsa_user_sgpr_kernarg_segment_ptr 1
  .amdhsa_system_sgpr_workgroup_id_x 1
  .amdhsa_float_denorm_mode_32 3
  .amdhsa_float_denorm_mode_16_64 3
.end_amdhsa_kernel"""
```

```python
import sys, struct, math
from emit import *

QF, KF, VF, HF, X1F, OF, AF, H3F = 0x000000, 0x200000, 0x400000, 0x600000, 0x800000, 0xA00000, 0xC00000, 0xE00000
ST2, GT, WS_SIZE = 0x1360000, 0x13A0000, 0x1400000
OOB = 0x40000000
def f2u(x): return struct.unpack("<I", struct.pack("<f", x))[0]
LOG2E = 1.4426950408889634
GC0 = -2.0 * LOG2E * math.sqrt(2.0 / math.pi)
GC1 = GC0 * 0.044715
QS = 0.25 * LOG2E

P_X, P_WQKV, P_WO, P_W1, P_W2, P_W3, P_W4, P_GATE, P_OUT, P_DBG, P_WS = 4, 6, 8, 12, 14, 16, 18, 20, 22, 24, 26
R_WS, R_W, R_X, R_Y = 28, 32, 36, 40
S_W, S_MI, S_KH, S_MT, S_NT, S_TB, S_XCD, S_J = 44, 45, 46, 47, 48, 49, 50, 51
T0 = 52
V_LANE, V_L16, V_T, V_HH = 1, 2, 3, 4

def srd(e, d, base, nbytes):
    e(f"s_mov_b32 s{d}, s{base}")
    e(f"s_mov_b32 s{d+1}, s{base+1}")
    e(f"s_mov_b32 s{d+2}, {nbytes}")
    e(f"s_mov_b32 s{d+3}, 0x20000")

def prologue(e, name, nwg):
    e.raw(f".globl {name}"); e.raw(".p2align 8"); e.raw(f".type {name},@function"); e.label(name)
    e.hist = []; e.vm = []; e.lg = []
    e(f"s_cmp_ge_u32 s2, {nwg}")
    e(f"s_cbranch_scc1 {name}_end")
    e("s_load_dwordx16 s[4:19], s[0:1], 0")
    e("s_load_dwordx8 s[20:27], s[0:1], 64")
    e(f"v_and_b32 v{V_LANE}, 63, v0")
    e(f"v_lshrrev_b32 v5, 6, v0")
    e(f"v_lshlrev_b32 v{V_L16}, 4, v{V_LANE}")
    e(f"v_readfirstlane_b32 s{S_W}, v5")
    e(f"v_and_b32 v{V_T}, 31, v{V_LANE}")
    e(f"v_lshrrev_b32 v{V_HH}, 5, v{V_LANE}")
    e(f"s_and_b32 s{S_XCD}, s2, 7")
    e(f"s_lshr_b32 s{S_J}, s2, 3")
    e(f"s_and_b32 s{S_J}, s{S_J}, 31")
    e(f"s_and_b32 s{S_MI}, s{S_W}, 1")
    e(f"s_lshr_b32 s{S_KH}, s{S_W}, 1")
    e(f"s_lshr_b32 s{S_MT}, s{S_J}, 3")
    e(f"s_lshl_b32 s{T0}, s{S_XCD}, 2")
    e(f"s_add_u32 s{S_MT}, s{S_MT}, s{T0}")
    e(f"s_and_b32 s{S_NT}, s{S_J}, 7")
    e(f"s_lshl_b32 s{S_TB}, s{S_MT}, 1")
    e(f"s_add_u32 s{S_TB}, s{S_TB}, s{S_MI}")
    e("s_waitcnt lgkmcnt(0)")
    srd(e, R_WS, P_WS, WS_SIZE)

def epilogue(e, name):
    e.label(f"{name}_end")
    e("s_endpgm")

def w128_dma_voff(e, vd, pitch, tmp):
    e(f"v_lshrrev_b32 v{tmp}, 3, v{V_LANE}")
    e(f"v_and_b32 v{vd}, 2, v{tmp}")
    e(f"v_lshlrev_b32 v{vd}, 1, v{vd}")
    e(f"v_xor_b32 v{vd}, v{vd}, v{V_LANE}")
    e(f"v_and_b32 v{vd}, 7, v{vd}")
    e(f"v_lshlrev_b32 v{vd}, 4, v{vd}")
    e(f"v_mul_u32_u24 v{tmp}, {pitch}, v{tmp}")
    e(f"v_add_u32 v{vd}, v{vd}, v{tmp}")

def w128_tr_addr(e, vd, tmp, natural, sj):
    e(f"v_bfe_u32 v{tmp}, v{V_LANE}, 2, 2")
    e(f"v_lshlrev_b32 v{vd}, {3 if natural else 2}, v{V_HH}")
    e(f"v_add_u32 v{vd}, v{vd}, v{tmp}")
    e(f"v_lshlrev_b32 v{vd}, 7, v{vd}")
    e(f"v_and_b32 v{tmp}, 2, v{tmp}")
    e(f"v_lshlrev_b32 v{tmp}, 5, v{tmp}")
    e(f"s_lshl_b32 s{T0}, s{sj}, 6")
    e(f"v_xor_b32 v{tmp}, s{T0}, v{tmp}")
    e(f"v_add_u32 v{vd}, v{vd}, v{tmp}")
    e(f"v_bfe_u32 v{tmp}, v{V_LANE}, 4, 1")
    e(f"v_lshlrev_b32 v{tmp}, 5, v{tmp}")
    e(f"v_add_u32 v{vd}, v{vd}, v{tmp}")
    e(f"v_and_b32 v{tmp}, 3, v{V_LANE}")
    e(f"v_lshlrev_b32 v{tmp}, 3, v{tmp}")
    e(f"v_add_u32 v{vd}, v{vd}, v{tmp}")

def tr_frag(e, dst, vaddr, off, second, tag):
    e(f"ds_read_b64_tr_b16 {v(dst,2)}, v{vaddr} offset:{off}", tag)
    e(f"ds_read_b64_tr_b16 {v(dst+2,2)}, v{vaddr} offset:{off+second}", tag)

def mfma(e, d, a, b, c):
    cs = "0" if c is None else v(c, 16)
    e(f"v_mfma_f32_32x32x16_bf16 {v(d,16)}, {v(a,4)}, {v(b,4)}, {cs}")

def gelu_consts(e, vc):
    e(f"v_mov_b32 v{vc}, {f2u(GC0):#x}"); e(f"v_mov_b32 v{vc+1}, {f2u(GC0):#x}")
    e(f"v_mov_b32 v{vc+2}, {f2u(GC1):#x}"); e(f"v_mov_b32 v{vc+3}, {f2u(GC1):#x}")
    e(f"v_mov_b32 v{vc+4}, 1.0"); e(f"v_mov_b32 v{vc+5}, 1.0")

def gelu_pack(e, x, n, t, vc, dst):
    for i in range(0, n, 2): e(f"v_pk_mul_f32 {v(t+i,2)}, {v(x+i,2)}, {v(x+i,2)}")
    for i in range(0, n, 2): e(f"v_pk_fma_f32 {v(t+i,2)}, {v(t+i,2)}, {v(vc+2,2)}, {v(vc,2)}")
    for i in range(0, n, 2): e(f"v_pk_mul_f32 {v(t+i,2)}, {v(t+i,2)}, {v(x+i,2)}")
    for i in range(n): e(f"v_exp_f32 v{t+i}, v{t+i}")
    for i in range(0, n, 2): e(f"v_pk_add_f32 {v(t+i,2)}, {v(t+i,2)}, {v(vc+4,2)}")
    for i in range(n): e(f"v_rcp_f32 v{t+i}, v{t+i}")
    for i in range(0, n, 2): e(f"v_pk_mul_f32 {v(t+i,2)}, {v(t+i,2)}, {v(x+i,2)}")
    for i in range(0, n, 2): e(f"v_cvt_pk_bf16_f32 v{dst+i//2}, v{t+i}, v{t+i+1}")

def half_sum(e, r, tmp):
    e(f"v_mov_b32 v{tmp}, v{r}")
    e(f"v_permlane32_swap_b32 v{r}, v{tmp}")
    e(f"v_add_f32 v{r}, v{r}, v{tmp}")

def exchange16(e, send, recv, lds_base_own_s, lds_base_par_s, va, vb):
    e(f"v_add_u32 v{va}, s{lds_base_own_s}, v{V_L16}")
    e(f"v_add_u32 v{vb}, s{lds_base_par_s}, v{V_L16}")
    for i in range(4): e(f"ds_write_b128 v{va}, {v(send+4*i,4)} offset:{i*1024}", "xw")
    e.wait(lg="xw")
    e("s_barrier")
    for i in range(4): e(f"ds_read_b128 {v(recv+4*i,4)}, v{vb} offset:{i*1024}", "xr")

def norm_frag(e, f, t, vrs, vnb):
    for i in range(4):
        e(f"v_lshlrev_b32 v{t+2*i}, 16, v{f+i}")
        e(f"v_and_b32 v{t+2*i+1}, 0xffff0000, v{f+i}")
    for i in range(4): e(f"v_pk_fma_f32 {v(t+2*i,2)}, {v(t+2*i,2)}, {v(vrs,2)}, {v(vnb,2)}")
    for i in range(4): e(f"v_cvt_pk_bf16_f32 v{f+i}, v{t+2*i}, v{t+2*i+1}")

def ln_finish(e, vs, vq, vrs, vnb):
    e(f"v_mul_f32 v{vs}, {f2u(1/512):#x}, v{vs}")
    e(f"v_mul_f32 v{vq}, {f2u(1/512):#x}, v{vq}")
    e(f"v_fma_f32 v{vq}, -v{vs}, v{vs}, v{vq}")
    e(f"v_max_f32 v{vq}, 0, v{vq}")
    e(f"v_add_f32 v{vq}, {f2u(1e-5):#x}, v{vq}")
    e(f"v_rsq_f32 v{vrs}, v{vq}")
    e(f"v_mov_b32 v{vrs+1}, v{vrs}")
    e(f"v_mul_f32 v{vnb}, -v{vs}, v{vrs}")
    e(f"v_mov_b32 v{vnb+1}, v{vnb}")

SCR = 65536

def scratch_bases(e, s_own, s_par):
    e(f"s_lshl_b32 s{s_own}, s{S_W}, 12")
    e(f"s_add_u32 s{s_own}, s{s_own}, {SCR}")
    e(f"s_xor_b32 s{s_par}, s{s_own}, 0x2000")

def w64_dma_all(e, vwo, pitch, nrows_total, tag, s_off, s_m0):
    e(f"s_mul_i32 s{T0}, s{S_W}, {8*pitch}")
    e(f"s_add_u32 s{s_off}, s{s_off}, s{T0}")
    e(f"s_lshl_b32 s{s_m0}, s{S_W}, 10")
    n = nrows_total // 32
    for i in range(n):
        e(f"s_add_u32 m0, s{s_m0}, {i*4096}")
        e(f"buffer_load_dwordx4 v{vwo}, {s(R_W,4)}, s{s_off} offen lds", tag)
        if i + 1 < n: e(f"s_add_u32 s{s_off}, s{s_off}, {32*pitch}")

def phase_B1(e):
    XR, XF, ACC_K, ACC_S, WF, TMP, VC = 128, 64, 32, 48, 192, 208, 224
    VWO, VXO, VSW, VSR, VAK, VAS, VS, VQ, VRS, VNB, VONE = 6, 7, 8, 9, 13, 14, 15, 16, 18, 20, 17
    S_OWN, S_PAR, S_OFF, S_M0, S_XO = 56, 57, 58, 59, 60
    srd(e, R_X, P_X, 2048 * 1024)
    srd(e, R_W, P_W1, 512 * 1024)
    e(f"v_lshrrev_b32 v5, 3, v{V_LANE}")
    e(f"v_and_b32 v{VSW}, 7, v{V_LANE}")
    e(f"v_lshlrev_b32 v{VXO}, 10, v5")
    e(f"v_lshl_add_u32 v{VXO}, v{VSW}, 4, v{VXO}")
    e(f"s_lshl_b32 s{S_XO}, s{S_TB}, 15")
    e(f"s_lshl_b32 s{T0}, s{S_KH}, 9")
    e(f"s_add_u32 s{S_XO}, s{S_XO}, s{T0}")
    for q in range(1, 4): e(f"s_add_u32 s{S_XO+q}, s{S_XO}, {q*8192}")
    for r in range(4):
        for q in range(4):
            e(f"buffer_load_dwordx4 {v(XR+(r*4+q)*4,4)}, v{VXO}, {s(R_X,4)}, s{S_XO+q} offen offset:{r*128}", f"x{r}")
    w128_dma_voff(e, VWO, 1024, TMP)
    e(f"s_lshl_b32 s{S_OFF}, s{S_NT}, 7")
    w64_dma_all(e, VWO, 1024, 512, "w", S_OFF, S_M0)
    scratch_bases(e, S_OWN, S_PAR)
    e(f"v_xor_b32 v5, v5, v{VSW}")
    e(f"v_lshlrev_b32 v5, 4, v5")
    e(f"v_lshl_add_u32 v{VSW}, v{VSW}, 9, v5")
    e(f"v_add_u32 v{VSW}, s{S_OWN}, v{VSW}")
    e(f"v_xor_b32 v5, v{V_T}, v{V_HH}")
    e(f"v_lshlrev_b32 v5, 4, v5")
    for sp in range(4):
        e(f"v_xor_b32 v{VSR+sp}, {32*sp}, v5")
        e(f"v_lshl_add_u32 v{VSR+sp}, v{V_HH}, 9, v{VSR+sp}")
        e(f"v_add_u32 v{VSR+sp}, s{S_OWN}, v{VSR+sp}")
    e(f"s_xor_b32 s{T0+1}, s{S_KH}, 1")
    w128_tr_addr(e, VAK, TMP, True, S_KH)
    w128_tr_addr(e, VAS, TMP, True, T0 + 1)
    e(f"s_lshl_b32 s{T0}, s{S_KH}, 15")
    e(f"v_add_u32 v{VAK}, s{T0}, v{VAK}")
    e(f"v_add_u32 v{VAS}, s{T0}, v{VAS}")
    e(f"v_mov_b32 v{VONE}, 0x3f803f80")
    e(f"v_mov_b32 v{VS}, 0"); e(f"v_mov_b32 v{VQ}, 0")
    gelu_consts(e, VC)
    for r in range(4):
        e.wait(vm=f"x{r}")
        for q in range(4): e(f"ds_write_b128 v{VSW}, {v(XR+(r*4+q)*4,4)} offset:{q*128}", "sw")
        for sp in range(4): e(f"ds_read_b128 {v(XF+(r*4+sp)*4,4)}, v{VSR+sp} offset:{sp*1024}", f"f{r}")
        if r > 0:
            e.wait(lg=f"f{r-1}")
            for i in range(16):
                d = XF + (r - 1) * 16 + i
                e(f"v_dot2_f32_bf16 v{VQ}, v{d}, v{d}, v{VQ}")
                e(f"v_dot2_f32_bf16 v{VS}, v{d}, v{VONE}, v{VS}")
    e.wait(lg="f3")
    for i in range(16):
        d = XF + 48 + i
        e(f"v_dot2_f32_bf16 v{VQ}, v{d}, v{d}, v{VQ}")
        e(f"v_dot2_f32_bf16 v{VS}, v{d}, v{VONE}, v{VS}")
    half_sum(e, VS, TMP); half_sum(e, VQ, TMP)
    e(f"v_lshlrev_b32 v5, 2, v{V_LANE}")
    e(f"v_add_u32 v{TMP}, s{S_OWN}, v5")
    e(f"v_add_u32 v{TMP+1}, s{S_PAR}, v5")
    e(f"ds_write2st64_b32 v{TMP}, v{VS}, v{VQ} offset0:0 offset1:1", "st")
    e.wait(lg="st")
    e("s_barrier")
    e(f"ds_read2st64_b32 {v(TMP+2,2)}, v{TMP+1} offset0:0 offset1:1", "st")
    e.wait(lg="st")
    e(f"v_add_f32 v{VS}, v{VS}, v{TMP+2}")
    e(f"v_add_f32 v{VQ}, v{VQ}, v{TMP+3}")
    ln_finish(e, VS, VQ, VRS, VNB)
    for sidx in range(16): norm_frag(e, XF + 4 * sidx, TMP, VRS, VNB)
    e.wait(vm="w")
    e("s_barrier")
    g64_loop(e, 16, lambda k: XF + 4 * k, lambda k: None, lambda k: k * 2048, 512, WF, VAK, VAS, ACC_K, ACC_S)
    exchange16(e, ACC_S, XR, S_OWN, S_PAR, TMP, TMP + 1)
    e.wait(lg="xr")
    for i in range(0, 16, 2): e(f"v_pk_add_f32 {v(ACC_K+i,2)}, {v(ACC_K+i,2)}, {v(XR+i,2)}")
    gelu_pack(e, ACC_K, 16, TMP, VC, XR + 16)
    frag_store(e, XR + 16, HF)

def frag_store(e, src, base):
    e(f"s_lshl_b32 s{T0}, s{S_TB}, 15")
    e(f"s_lshl_b32 s{T0+1}, s{S_NT}, 12")
    e(f"s_add_u32 s{T0}, s{T0}, s{T0+1}")
    e(f"s_lshl_b32 s{T0+1}, s{S_KH}, 11")
    e(f"s_add_u32 s{T0}, s{T0}, s{T0+1}")
    e(f"s_add_u32 s{T0}, s{T0}, {base}")
    e(f"buffer_store_dwordx4 {v(src,4)}, v{V_L16}, {s(R_WS,4)}, s{T0} offen", "st")
    e(f"buffer_store_dwordx4 {v(src+4,4)}, v{V_L16}, {s(R_WS,4)}, s{T0} offen offset:1024", "st")

def g64_loop(e, nks, areg, await_tag, woff, second, WF, VAK, VAS, ACC_K, ACC_S, first=True, k0=0):
    def rd(k):
        b = WF + (k & 1) * 8
        tr_frag(e, b, VAK, woff(k), second, f"wf{k}")
        tr_frag(e, b + 4, VAS, woff(k), second, f"wf{k}")
    rd(k0)
    for k in range(k0, k0 + nks):
        if k + 1 < k0 + nks: rd(k + 1)
        e.wait(vm=await_tag(k), lg=f"wf{k}")
        b = WF + (k & 1) * 8
        z = first and k == k0
        mfma(e, ACC_K, b, areg(k), None if z else ACC_K)
        mfma(e, ACC_S, b + 4, areg(k), None if z else ACC_S)

def phase_G64(e, kind):
    AFR, ACC_K, ACC_S, WF, TMP, RCV, XRES = 64, 32, 48, 192, 208, 128, 144
    VWO, VA0, VA1, VAK, VAS, VG = 6, 7, 8, 13, 14, 15
    S_OWN, S_PAR, S_OFF, S_M0, S_AO = 56, 57, 58, 59, 60
    srd(e, R_W, P_W2 if kind == "B2" else P_WO, 512 * 1024)
    w128_dma_voff(e, VWO, 1024, TMP)
    e(f"s_lshl_b32 s{S_OFF}, s{S_NT}, 7")
    w64_dma_all(e, VWO, 1024, 512, "w", S_OFF, S_M0)
    if kind == "B2":
        e(f"s_lshl_b32 s{T0}, s{S_TB}, 5")
        e(f"s_add_u32 s{T0+1}, s{S_KH}, 1")
        e(f"v_add_u32 v5, s{T0}, v{V_T}")
        for (vd, op) in ((VA0, "v_subrev_u32"), (VA1, "v_add_u32")):
            e(f"{op} v{TMP}, s{T0+1}, v5")
            e(f"v_lshrrev_b32 v{vd}, 5, v{TMP}")
            e(f"v_lshlrev_b32 v{vd}, 15, v{vd}")
            e(f"v_and_b32 v{TMP+1}, 31, v{TMP}")
            e(f"v_lshl_add_u32 v{vd}, v{TMP+1}, 4, v{vd}")
            e(f"v_lshl_add_u32 v{vd}, v{V_HH}, 9, v{vd}")
            e(f"v_mov_b32 v{TMP+1}, {OOB:#x}")
            e(f"v_cmp_gt_u32 vcc, 2048, v{TMP}")
            e(f"v_cndmask_b32 v{vd}, v{TMP+1}, v{vd}, vcc")
        e(f"s_lshl_b32 s{S_AO}, s{S_KH}, 14")
        e(f"s_add_u32 s{S_AO}, s{S_AO}, {HF}")
        va = lambda k: VA0 if k < 8 else VA1
    else:
        e(f"s_lshl_b32 s{S_AO}, s{S_KH}, 14")
        e(f"s_lshl_b32 s{T0}, s{S_TB}, 15")
        e(f"s_add_u32 s{S_AO}, s{S_AO}, s{T0}")
        e(f"s_add_u32 s{S_AO}, s{S_AO}, {OF}")
        va = lambda k: V_L16
    for q in range(1, 4): e(f"s_add_u32 s{S_AO+q}, s{S_AO}, {q*4096}")
    for k in range(16):
        e(f"buffer_load_dwordx4 {v(AFR+4*k,4)}, v{va(k)}, {s(R_WS,4)}, s{S_AO+k//4} offen offset:{(k%4)*1024}", f"a{k}")
    if kind == "B2":
        srd(e, R_X, P_X, 2048 * 1024)
        e(f"v_lshlrev_b32 v5, 10, v{V_T}")
        e(f"v_lshl_add_u32 v5, v{V_HH}, 4, v5")
        e(f"s_lshl_b32 s{T0}, s{S_TB}, 15")
        e(f"s_lshl_b32 s{T0+1}, s{S_NT}, 7")
        e(f"s_add_u32 s{T0}, s{T0}, s{T0+1}")
        e(f"s_lshl_b32 s{T0+1}, s{S_KH}, 6")
        e(f"s_add_u32 s{T0}, s{T0}, s{T0+1}")
        e(f"buffer_load_dwordx4 {v(XRES,4)}, v5, {s(R_X,4)}, s{T0} offen", "xres")
        e(f"buffer_load_dwordx4 {v(XRES+4,4)}, v5, {s(R_X,4)}, s{T0} offen offset:32", "xres")
    else:
        e(f"v_lshlrev_b32 v5, 2, v{V_T}")
        e(f"s_lshl_b32 s{T0}, s{S_TB}, 7")
        e(f"s_add_u32 s{T0}, s{T0}, {GT}")
        e(f"buffer_load_dword v{VG}, v5, {s(R_WS,4)}, s{T0} offen", "xres")
    scratch_bases(e, S_OWN, S_PAR)
    e(f"s_xor_b32 s{T0+1}, s{S_KH}, 1")
    w128_tr_addr(e, VAK, TMP, False, S_KH)
    w128_tr_addr(e, VAS, TMP, False, T0 + 1)
    e(f"s_lshl_b32 s{T0}, s{S_KH}, 15")
    e(f"v_add_u32 v{VAK}, s{T0}, v{VAK}")
    e(f"v_add_u32 v{VAS}, s{T0}, v{VAS}")
    e.wait(vm="w")
    e("s_barrier")
    g64_loop(e, 16, lambda k: AFR + 4 * k, lambda k: f"a{k}", lambda k: k * 2048, 1024, WF, VAK, VAS, ACC_K, ACC_S)
    exchange16(e, ACC_S, RCV, S_OWN, S_PAR, TMP, TMP + 1)
    e.wait(vm="xres", lg="xr")
    for i in range(0, 16, 2): e(f"v_pk_add_f32 {v(ACC_K+i,2)}, {v(ACC_K+i,2)}, {v(RCV+i,2)}")
    if kind == "B2":
        for p in range(2):
            e(f"v_permlane32_swap_b32 v{XRES+4*p}, v{XRES+4*p+2}")
            e(f"v_permlane32_swap_b32 v{XRES+4*p+1}, v{XRES+4*p+3}")
        for i in range(8):
            e(f"v_lshlrev_b32 v{TMP+2*i}, 16, v{XRES+i}")
            e(f"v_and_b32 v{TMP+2*i+1}, 0xffff0000, v{XRES+i}")
        for i in range(0, 16, 2): e(f"v_pk_add_f32 {v(ACC_K+i,2)}, {v(ACC_K+i,2)}, {v(TMP+i,2)}")
        for i in range(8): e(f"v_cvt_pk_bf16_f32 v{RCV+i}, v{ACC_K+2*i}, v{ACC_K+2*i+1}")
        frag_store(e, RCV, X1F)
        e(f"v_pk_mul_f32 {v(TMP+2,2)}, {v(ACC_K,2)}, {v(ACC_K,2)}")
        e(f"v_pk_add_f32 {v(TMP,2)}, {v(ACC_K,2)}, {v(ACC_K+2,2)}")
        e(f"v_pk_fma_f32 {v(TMP+2,2)}, {v(ACC_K+2,2)}, {v(ACC_K+2,2)}, {v(TMP+2,2)}")
        for i in range(4, 16, 2):
            e(f"v_pk_add_f32 {v(TMP,2)}, {v(TMP,2)}, {v(ACC_K+i,2)}")
            e(f"v_pk_fma_f32 {v(TMP+2,2)}, {v(ACC_K+i,2)}, {v(ACC_K+i,2)}, {v(TMP+2,2)}")
        e(f"v_add_f32 v{TMP}, v{TMP}, v{TMP+1}")
        e(f"v_add_f32 v{TMP+1}, v{TMP+2}, v{TMP+3}")
        half_sum(e, TMP, TMP + 4); half_sum(e, TMP + 1, TMP + 4)
        e(f"v_lshlrev_b32 v5, 3, v{V_T}")
        e(f"s_lshl_b32 s{T0}, s{S_TB}, 12")
        e(f"s_lshl_b32 s{T0+1}, s{S_NT}, 9")
        e(f"s_add_u32 s{T0}, s{T0}, s{T0+1}")
        e(f"s_lshl_b32 s{T0+1}, s{S_KH}, 8")
        e(f"s_add_u32 s{T0}, s{T0}, s{T0+1}")
        e(f"s_add_u32 s{T0}, s{T0}, {ST2}")
        e("s_mov_b32 exec_hi, 0")
        e(f"buffer_store_dwordx2 {v(TMP,2)}, v5, {s(R_WS,4)}, s{T0} offen", "st")
        e("s_mov_b64 exec, -1")
    else:
        for i in range(16): e(f"v_mul_f32 v{ACC_K+i}, v{VG}, v{ACC_K+i}")
        for i in range(8): e(f"v_cvt_pk_bf16_f32 v{RCV+i}, v{ACC_K+2*i}, v{ACC_K+2*i+1}")
        frag_store(e, RCV, AF)

def phase_B3(e, name):
    AFR, ACC, WF, TMP, VC, STT = 128, 32, 80, 104, 120, 16
    VWO, VTR, VRS, VNB = 6, 9, 10, 12
    S_NG, S_OFF, S_M0, S_AO = 56, 58, 59, 60
    NRES = 26
    e(f"s_and_b32 s{S_NG}, s{S_J}, 15")
    e(f"s_cmp_eq_u32 s{S_NG}, 15")
    e(f"s_cbranch_scc1 {name}_end")
    e(f"s_lshr_b32 s{S_TB}, s{S_J}, 4")
    e(f"s_lshl_b32 s{T0}, s{S_XCD}, 1")
    e(f"s_add_u32 s{S_TB}, s{S_TB}, s{T0}")
    e(f"s_lshl_b32 s{S_TB}, s{S_TB}, 2")
    e(f"s_add_u32 s{S_TB}, s{S_TB}, s{S_W}")
    srd(e, R_W, P_W3, 512 * 2752)
    e(f"v_lshlrev_b32 v5, 3, v{V_LANE}")
    e(f"s_lshl_b32 s{T0}, s{S_TB}, 12")
    e(f"s_add_u32 s{T0}, s{T0}, {ST2}")
    for i in range(8): e(f"buffer_load_dwordx2 {v(STT+2*i,2)}, v5, {s(R_WS,4)}, s{T0} offen offset:{i*512}", "stt")
    for i in range(3):
        e(f"v_add_u32 v5, {64*i}, v{V_LANE}")
        e(f"v_mul_u32_u24 v{TMP}, 5462, v5")
        e(f"v_lshrrev_b32 v{TMP}, 16, v{TMP}")
        e(f"v_mul_u32_u24 v{TMP+1}, 12, v{TMP}")
        e(f"v_sub_u32 v{TMP+1}, v5, v{TMP+1}")
        e(f"v_mul_u32_u24 v{VWO+i}, 2752, v{TMP}")
        e(f"v_lshl_add_u32 v{VWO+i}, v{TMP+1}, 4, v{VWO+i}")
    e(f"s_mul_i32 s{S_OFF}, s{S_NG}, 192")
    e(f"s_mul_i32 s{T0}, s{S_W}, {16*2752}")
    e(f"s_add_u32 s{S_OFF}, s{S_OFF}, s{T0}")
    e(f"s_mul_i32 s{S_M0}, s{S_W}, 3072")
    e(f"s_lshl_b32 s{S_AO}, s{S_TB}, 15")
    e(f"s_add_u32 s{S_AO}, s{S_AO}, {X1F}")
    def wdma(c):
        slot = c % 6
        for i in range(3):
            e(f"s_add_u32 m0, s{S_M0}, {slot*12288 + i*1024}")
            e(f"buffer_load_dwordx4 v{VWO+i}, {s(R_W,4)}, s{S_OFF} offen lds", f"w{c}")
        e(f"s_add_u32 s{S_OFF}, s{S_OFF}, {64*2752}")
    for c in range(8):
        if c < 6: wdma(c)
        for k in range(4 * c, 4 * c + 4):
            e(f"buffer_load_dwordx4 {v(AFR+4*k,4)}, v{V_L16}, {s(R_WS,4)}, s{S_AO} offen offset:{(k%4)*1024}", f"a{k}")
        e(f"s_add_u32 s{S_AO}, s{S_AO}, 4096")
    e(f"v_bfe_u32 v5, v{V_LANE}, 2, 2")
    e(f"v_lshl_add_u32 v5, v{V_HH}, 2, v5")
    e(f"v_mul_u32_u24 v{VTR}, 192, v5")
    e(f"v_bfe_u32 v5, v{V_LANE}, 4, 1")
    e(f"v_lshl_add_u32 v{VTR}, v5, 5, v{VTR}")
    e(f"v_and_b32 v5, 3, v{V_LANE}")
    e(f"v_lshl_add_u32 v{VTR}, v5, 3, v{VTR}")
    e(f"v_add_u32 v14, 36864, v{VTR}")
    gelu_consts(e, VC)
    e.wait(vm="stt")
    for i in range(1, 8): e(f"v_pk_add_f32 {v(STT,2)}, {v(STT,2)}, {v(STT+2*i,2)}")
    half_sum(e, STT, TMP); half_sum(e, STT + 1, TMP)
    ln_finish(e, STT, STT + 1, VRS, VNB)
    def rd(k):
        b = WF + (k & 1) * 12
        off = ((k // 4) % 6) * 12288 + (k % 4) * 3072
        va = VTR
        if off >= 36864: va, off = 14, off - 36864
        for j in range(3): tr_frag(e, b + 4 * j, va, off + 64 * j, 8 * 192, f"wf{k}")
    for k in range(32):
        c = k // 4
        if k % 4 == 0:
            e.wait(vm=f"w{c}", lg="all")
            e("s_barrier")
            if c in (1, 2): wdma(c + 5)
            rd(k)
        if k % 4 != 3: rd(k + 1)
        e.wait(vm=f"a{k}")
        norm_frag(e, AFR + 4 * k, TMP, VRS, VNB)
        e.wait(lg=f"wf{k}")
        b = WF + (k & 1) * 12
        for j in range(3): mfma(e, ACC + 16 * j, b + 4 * j, AFR + 4 * k, None if k == 0 else ACC + 16 * j)
    e(f"s_mul_i32 s{T0}, s{S_TB}, {86*1024}")
    e(f"s_mul_i32 s{T0+1}, s{S_NG}, 6144")
    e(f"s_add_u32 s{T0}, s{T0}, s{T0+1}")
    e(f"s_add_u32 s{T0}, s{T0}, {H3F}")
    for j in range(3):
        gelu_pack(e, ACC + 16 * j, 16, TMP, VC, AFR + 8 * j)
        e(f"buffer_store_dwordx4 {v(AFR+8*j,4)}, v{V_L16}, {s(R_WS,4)}, s{T0} offen", "st")
        e(f"buffer_store_dwordx4 {v(AFR+8*j+4,4)}, v{V_L16}, {s(R_WS,4)}, s{T0} offen offset:1024", "st")
        if j == 0:
            e(f"s_cmp_eq_u32 s{S_NG}, 14")
            e(f"s_cbranch_scc1 {name}_end")
        if j < 2: e(f"s_add_u32 s{T0}, s{T0}, 2048")

def phase_B4(e):
    AFR, ACC_K, ACC_S, WF, TMP = 84, 20, 36, 52, 68
    VWO, VAK, VAS, VG = 6, 7, 8, 9
    X1R, GAR = 12, 240
    S_OWN, S_PAR, S_OFF, S_M0, S_AO = 56, 57, 58, 59, 60
    srd(e, R_W, P_W4, 1376 * 1024)
    srd(e, R_Y, P_OUT, 2048 * 1024)
    w128_dma_voff(e, VWO, 1024, TMP)
    e(f"s_lshl_b32 s{S_OFF}, s{S_NT}, 7")
    e(f"s_mul_i32 s{T0}, s{S_KH}, {43*16*1024}")
    e(f"s_add_u32 s{S_OFF}, s{S_OFF}, s{T0}")
    e(f"s_lshl_b32 s{T0}, s{S_MI}, 15")
    e(f"s_add_u32 s{S_OFF}, s{S_OFF}, s{T0}")
    e(f"s_mul_i32 s{S_M0}, s{S_KH}, 40960")
    e(f"s_lshl_b32 s{T0}, s{S_MI}, 12")
    e(f"s_add_u32 s{S_M0}, s{S_M0}, s{T0}")
    e(f"s_mul_i32 s{S_AO}, s{S_TB}, {86*1024}")
    e(f"s_mul_i32 s{T0}, s{S_KH}, {43*1024}")
    e(f"s_add_u32 s{S_AO}, s{S_AO}, s{T0}")
    e(f"s_add_u32 s{S_AO}, s{S_AO}, {H3F}")
    def wdma(c):
        slot = c % 5
        for i in range(4):
            e(f"s_add_u32 m0, s{S_M0}, {slot*8192 + i*1024}")
            e(f"buffer_load_dwordx4 v{VWO}, {s(R_W,4)}, s{S_OFF} offen lds", f"w{c}")
            e(f"s_add_u32 s{S_OFF}, s{S_OFF}, {8192 if i < 3 else 8192 + 32768}")
    def aload(c):
        for k in range(4 * c, min(4 * c + 4, 43)):
            e(f"buffer_load_dwordx4 {v(AFR+4*k,4)}, v{V_L16}, {s(R_WS,4)}, s{S_AO} offen offset:{(k%4)*1024}", f"a{k}")
        e(f"s_add_u32 s{S_AO}, s{S_AO}, 4096")
    for c in range(5):
        wdma(c); aload(c)
    e(f"s_lshl_b32 s{T0}, s{S_TB}, 15")
    e(f"s_lshl_b32 s{T0+1}, s{S_NT}, 12")
    e(f"s_add_u32 s{T0}, s{T0}, s{T0+1}")
    e(f"s_lshl_b32 s{T0+1}, s{S_KH}, 11")
    e(f"s_add_u32 s{T0+2}, s{T0}, s{T0+1}")
    e(f"s_add_u32 s{T0}, s{T0+2}, {X1F}")
    e(f"s_add_u32 s{T0+2}, s{T0+2}, {AF}")
    e(f"buffer_load_dwordx4 {v(X1R,4)}, v{V_L16}, {s(R_WS,4)}, s{T0} offen", "res")
    e(f"buffer_load_dwordx4 {v(X1R+4,4)}, v{V_L16}, {s(R_WS,4)}, s{T0} offen offset:1024", "res")
    e(f"v_lshlrev_b32 v5, 2, v{V_T}")
    e(f"s_lshl_b32 s{T0}, s{S_TB}, 7")
    e(f"s_add_u32 s{T0}, s{T0}, {GT}")
    e(f"buffer_load_dword v{VG}, v5, {s(R_WS,4)}, s{T0} offen", "res")
    e(f"s_xor_b32 s{T0+1}, s{S_KH}, 1")
    w128_tr_addr(e, VAK, TMP, False, S_KH)
    w128_tr_addr(e, VAS, TMP, False, T0 + 1)
    e(f"s_mul_i32 s{T0}, s{S_KH}, 40960")
    e(f"v_add_u32 v{VAK}, s{T0}, v{VAK}")
    e(f"v_add_u32 v{VAS}, s{T0}, v{VAS}")
    for c in range(11):
        e.wait(vm=f"w{c}", lg="all")
        e("s_barrier")
        if c >= 1 and c + 4 < 11:
            wdma(c + 4); aload(c + 4)
        if c == 8:
            e(f"buffer_load_dwordx4 {v(AFR,4)}, v{V_L16}, {s(R_WS,4)}, s{T0+2} offen", "res")
            e(f"buffer_load_dwordx4 {v(AFR+4,4)}, v{V_L16}, {s(R_WS,4)}, s{T0+2} offen offset:1024", "res")
        n = min(4, 43 - 4 * c)
        g64_loop(e, n, lambda k: AFR + 4 * k, lambda k: f"a{k}", lambda k: (c % 5) * 8192 + (k % 4) * 2048, 1024,
                 WF, VAK, VAS, ACC_K, ACC_S, first=(c == 0), k0=4 * c)
    e(f"s_lshl_b32 s{S_OWN}, s{S_W}, 12")
    e(f"s_add_u32 s{S_OWN}, s{S_OWN}, 16384")
    e(f"s_xor_b32 s{S_PAR}, s{S_OWN}, 0x2000")
    RCV = AFR + 16
    exchange16(e, ACC_S, RCV, S_OWN, S_PAR, TMP, TMP + 1)
    e.wait(vm="res", lg="xr")
    for i in range(0, 16, 2): e(f"v_pk_add_f32 {v(ACC_K+i,2)}, {v(ACC_K+i,2)}, {v(RCV+i,2)}")
    for i in range(8):
        e(f"v_lshlrev_b32 v{TMP+2*i}, 16, v{X1R+i}")
        e(f"v_and_b32 v{TMP+2*i+1}, 0xffff0000, v{X1R+i}")
    for i in range(0, 16, 2): e(f"v_pk_add_f32 {v(ACC_K+i,2)}, {v(ACC_K+i,2)}, {v(TMP+i,2)}")
    e(f"v_sub_f32 v{VG}, 1.0, v{VG}")
    for i in range(8):
        e(f"v_lshlrev_b32 v{TMP+2*i}, 16, v{AFR+i}")
        e(f"v_and_b32 v{TMP+2*i+1}, 0xffff0000, v{AFR+i}")
    for i in range(16): e(f"v_fma_f32 v{ACC_K+i}, v{ACC_K+i}, v{VG}, v{TMP+i}")
    for i in range(8): e(f"v_cvt_pk_bf16_f32 v{RCV+i}, v{ACC_K+2*i}, v{ACC_K+2*i+1}")
    for p in range(2):
        e(f"v_permlane32_swap_b32 v{RCV+4*p}, v{RCV+4*p+2}")
        e(f"v_permlane32_swap_b32 v{RCV+4*p+1}, v{RCV+4*p+3}")
    e(f"v_lshlrev_b32 v5, 10, v{V_T}")
    e(f"v_lshl_add_u32 v5, v{V_HH}, 4, v5")
    e(f"s_lshl_b32 s{T0}, s{S_TB}, 15")
    e(f"s_lshl_b32 s{T0+1}, s{S_NT}, 7")
    e(f"s_add_u32 s{T0}, s{T0}, s{T0+1}")
    e(f"s_lshl_b32 s{T0+1}, s{S_KH}, 6")
    e(f"s_add_u32 s{T0}, s{T0}, s{T0+1}")
    e(f"buffer_store_dwordx4 {v(RCV,4)}, v5, {s(R_Y,4)}, s{T0} offen", "st")
    e(f"buffer_store_dwordx4 {v(RCV+4,4)}, v5, {s(R_Y,4)}, s{T0} offen offset:32", "st")

def phase_A1(e):
    XF, ACC, WF, TMP = 128, 32, 80, 104
    VWO, VTR, VXA, VG = 6, 7, 8, 16
    S_OFF, S_M0, S_XO, S_NI = 58, 59, 60, S_KH
    srd(e, R_X, P_X, 2048 * 1024)
    srd(e, R_W, P_WQKV, 512 * 3072)
    srd(e, R_Y, P_GATE, 1024)
    e(f"s_lshl_b32 s{S_XO}, s{S_MT}, 16")
    e(f"s_lshl_b32 s{S_M0}, s{S_W}, 14")
    e(f"s_add_u32 s{S_XO}, s{S_XO}, s{S_M0}")
    for r in range(16):
        e(f"v_xor_b32 v{TMP+(r&1)}, {r*16}, v{V_L16}")
        if r % 4 == 0:
            e(f"s_add_u32 m0, s{S_M0}, {r*1024}")
            if r: e(f"s_add_u32 s{S_XO}, s{S_XO}, 4096")
        e(f"buffer_load_dwordx4 v{TMP+(r&1)}, {s(R_X,4)}, s{S_XO} offen offset:{(r%4)*1024} lds", "x")
    e(f"s_lshl_b32 s{T0+2}, s{S_W}, 10")
    e(f"s_add_u32 s{T0+2}, s{T0+2}, {76*1024}")
    e(f"s_mov_b32 m0, s{T0+2}")
    e(f"buffer_load_dwordx4 v{V_L16}, {s(R_Y,4)}, 0 offen lds", "x")
    w128_dma_voff(e, VWO, 3072, TMP + 2)
    e(f"s_lshl_b32 s{S_OFF}, s{S_NT}, 7")
    e(f"s_mul_i32 s{T0}, s{S_W}, {8*3072}")
    e(f"s_add_u32 s{S_OFF}, s{S_OFF}, s{T0}")
    e(f"s_lshl_b32 s{S_M0}, s{S_W}, 10")
    slot_base = lambda p: 65536 if p % 6 == 0 else ((p % 6) - 1) * 12288
    def wdma(p):
        for part in range(3):
            e(f"s_add_u32 m0, s{S_M0}, {slot_base(p) + part*4096 - part*1024}")
            e(f"buffer_load_dwordx4 v{VWO}, {s(R_W,4)}, s{S_OFF} offen offset:{part*1024} lds", f"w{p}")
        e(f"s_add_u32 s{S_OFF}, s{S_OFF}, {32*3072}")
    wdma(0)
    e(f"s_lshl_b32 s{T0}, s{S_MI}, 15")
    e(f"v_and_b32 v5, 15, v{V_T}")
    e(f"v_xor_b32 v5, v5, v{V_HH}")
    e(f"v_lshlrev_b32 v5, 4, v5")
    for sp in range(8):
        e(f"v_xor_b32 v{VXA+sp}, {32*sp}, v5")
        e(f"v_lshl_add_u32 v{VXA+sp}, v{V_T}, 10, v{VXA+sp}")
        e(f"v_add_u32 v{VXA+sp}, s{T0}, v{VXA+sp}")
    w128_tr_addr(e, VTR, TMP + 2, True, S_NI)
    e(f"v_add_u32 v17, 32768, v{VTR}")
    e.wait(vm="x")
    e("s_barrier")
    for k in range(32): e(f"ds_read_b128 {v(XF+4*k,4)}, v{VXA+k%8} offset:{(k//8)*256}", "xf")
    e.wait(lg="xf")
    e("s_barrier")
    for p in range(1, 6): wdma(p)
    e(f"v_lshlrev_b32 v5, 4, v{V_HH}")
    e(f"v_add_u32 v5, s{T0+2}, v5")
    e(f"v_mov_b32 v{VG}, 0"); e(f"v_mov_b32 v18, 0")
    for blk in range(4):
        for k in range(8): e(f"ds_read_b128 {v(ACC+4*k,4)}, v5 offset:{(blk*8+k)*32}", "gw")
        e.wait(lg="gw")
        for i in range(32): e(f"v_dot2_f32_bf16 v{VG+2*(i&1)}, v{XF+blk*32+i}, v{ACC+i}, v{VG+2*(i&1)}")
    e(f"v_add_f32 v{VG}, v{VG}, v18")
    half_sum(e, VG, TMP)
    e(f"v_mul_f32 v{VG}, {f2u(-LOG2E):#x}, v{VG}")
    e(f"v_exp_f32 v{VG}, v{VG}")
    e(f"v_add_f32 v{VG}, 1.0, v{VG}")
    e(f"v_rcp_f32 v{VG}, v{VG}")
    lab = e.newlabel("A1_nog")
    e(f"s_or_b32 s{T0}, s{S_NT}, s{S_NI}")
    e(f"s_cmp_lg_u32 s{T0}, 0")
    e(f"s_cbranch_scc1 {lab}")
    e(f"v_lshlrev_b32 v5, 2, v{V_T}")
    e(f"s_lshl_b32 s{T0}, s{S_TB}, 7")
    e(f"s_add_u32 s{T0}, s{T0}, {GT}")
    e.raw(f"    buffer_store_dword v{VG}, v5, {s(R_WS,4)}, s{T0} offen")
    e.label(lab)
    def rd(k):
        b = WF + (k & 1) * 12
        off = slot_base(k // 2) + (k % 2) * 2048
        va = VTR
        if off >= 32768: va, off = 17, off - 32768
        for j in range(3): tr_frag(e, b + 4 * j, va, off + 4096 * j, 512, f"wf{k}")
    for p in range(16):
        e.wait(vm=f"w{p}", lg="all")
        e("s_barrier")
        if p >= 1 and p + 5 < 16: wdma(p + 5)
        rd(2 * p); rd(2 * p + 1)
        for k in (2 * p, 2 * p + 1):
            e.wait(lg=f"wf{k}")
            b = WF + (k & 1) * 12
            mfma(e, ACC, b, XF + 4 * k, None if k == 0 else ACC)
            mfma(e, ACC + 16, b + 4, XF + 4 * k, None if k == 0 else ACC + 16)
            mfma(e, ACC + 32, XF + 4 * k, b + 8, None if k == 0 else ACC + 32)
    e(f"s_lshl_b32 s{T0}, s{S_NT}, 2")
    e(f"s_lshl_b32 s{T0+1}, s{S_NI}, 1")
    e(f"s_add_u32 s{T0}, s{T0}, s{T0+1}")
    e(f"s_lshl_b32 s{T0}, s{T0}, 6")
    e(f"s_add_u32 s{T0}, s{T0}, s{S_TB}")
    e(f"s_lshl_b32 s{T0}, s{T0}, 10")
    e(f"s_add_u32 s{T0+1}, s{T0}, 65536")
    for i in range(16): e(f"v_mul_f32 v{ACC+i}, {f2u(QS):#x}, v{ACC+i}")
    for i in range(24): e(f"v_cvt_pk_bf16_f32 v{XF+i}, v{ACC+2*i}, v{ACC+2*i+1}")
    e(f"buffer_store_dwordx4 {v(XF,4)}, v{V_L16}, {s(R_WS,4)}, s{T0} offen", "st")
    e(f"buffer_store_dwordx4 {v(XF+4,4)}, v{V_L16}, {s(R_WS,4)}, s{T0+1} offen", "st")
    e(f"s_add_u32 s{T0}, s{T0}, {KF}"); e(f"s_add_u32 s{T0+1}, s{T0+1}, {KF}")
    e(f"buffer_store_dwordx4 {v(XF+8,4)}, v{V_L16}, {s(R_WS,4)}, s{T0} offen", "st")
    e(f"buffer_store_dwordx4 {v(XF+12,4)}, v{V_L16}, {s(R_WS,4)}, s{T0+1} offen", "st")
    e(f"s_add_u32 s{T0}, s{T0}, {VF-KF}")
    e(f"v_bfe_u32 v5, v{V_LANE}, 4, 1")
    e(f"v_lshlrev_b32 v5, 16, v5")
    e(f"v_lshl_add_u32 v5, v{V_HH}, 8, v5")
    e(f"v_and_b32 v{TMP}, 15, v{V_LANE}")
    e(f"v_lshl_add_u32 v5, v{TMP}, 4, v5")
    e(f"buffer_store_dwordx4 {v(XF+16,4)}, v5, {s(R_WS,4)}, s{T0} offen", "st")
    e(f"buffer_store_dwordx4 {v(XF+20,4)}, v5, {s(R_WS,4)}, s{T0} offen offset:512", "st")

def phase_A2(e):
    KR, VR, QR, MSK, PL = 16, 56, 136, 144, 152
    SM, NEG, O, WK = 160, 176, 192, 208
    VM, VT = 6, 7
    S_MASK = 64
    S_NV, S_EDGE = 56, 57
    e(f"s_lshl_b32 s{T0}, s{S_J}, 6")
    e(f"s_lshl_b32 s{T0+1}, s{S_XCD}, 3")
    e(f"s_add_u32 s{T0}, s{T0}, s{T0+1}")
    e(f"s_lshl_b32 s{T0+1}, s{S_W}, 1")
    e(f"s_add_u32 s{T0+2}, s{T0}, s{T0+1}")
    e(f"s_lshl_b32 s{T0+2}, s{T0+2}, 10")
    e(f"buffer_load_dwordx4 {v(QR,4)}, v{V_L16}, {s(R_WS,4)}, s{T0+2} offen", "q")
    e(f"buffer_load_dwordx4 {v(QR+4,4)}, v{V_L16}, {s(R_WS,4)}, s{T0+2} offen offset:1024", "q")
    e(f"s_lshl_b32 s{T0+1}, s{S_W}, 2")
    e(f"s_add_u32 s{T0}, s{T0}, s{T0+1}")
    e(f"s_lshl_b32 s{T0}, s{T0}, 10")
    e(f"s_add_u32 s{T0}, s{T0}, {KF - 8192}")
    e(f"s_lshr_b32 s{T0+1}, s{S_W}, 1")
    e(f"s_or_b32 s{T0+1}, s{T0+1}, s{S_XCD}")
    e(f"s_cmp_eq_u32 s{T0+1}, 0")
    e(f"s_cselect_b32 s{T0}, {OOB:#x}, s{T0}")
    e(f"s_add_u32 s{T0+1}, s{T0}, {VF-KF}")
    e(f"s_lshl_b32 m0, s{S_W}, 12")
    for i in range(4): e(f"buffer_load_dwordx4 v{V_L16}, {s(R_WS,4)}, s{T0} offen offset:{i*1024} lds", "kv")
    e(f"s_add_u32 m0, m0, 16384")
    for i in range(4): e(f"buffer_load_dwordx4 v{V_L16}, {s(R_WS,4)}, s{T0+1} offen offset:{i*1024} lds", "kv")
    for r in range(16):
        lo = hi = 0
        for q in range(32):
            if 8 * (r >> 2) + (r & 3) <= q: lo |= 1 << q
            if 8 * (r >> 2) + 4 + (r & 3) <= q: hi |= 1 << q
        e(f"s_mov_b32 s{S_MASK+2*r}, {lo:#x}"); e(f"s_mov_b32 s{S_MASK+2*r+1}, {hi:#x}")
    e(f"v_mov_b32 v{VM}, 0xffff"); e(f"v_mov_b32 v{VT}, 0xffff0000")
    for i in range(8):
        e(f"v_cndmask_b32 v{MSK+i}, 0, v{VM}, {s(S_MASK+4*i,2)}")
        e(f"v_cndmask_b32 v5, 0, v{VT}, {s(S_MASK+4*i+2,2)}")
        e(f"v_or_b32 v{MSK+i}, v{MSK+i}, v5")
    for i in range(80): e(f"v_mov_b32 v{VR+i}, 0x3f803f80")
    e(f"s_cmp_eq_u32 s{S_XCD}, 0")
    e(f"s_cselect_b32 s{S_NV}, s{S_W}, 4")
    e(f"s_cselect_b32 s{S_EDGE}, {f2u(-1e30):#x}, 0")
    e(f"s_lshl_b32 s{T0}, s{S_W}, 11")
    e(f"v_add_u32 v8, s{T0}, v{V_L16}")
    e(f"v_and_b32 v5, 15, v{V_LANE}")
    e(f"v_lshlrev_b32 v9, 4, v5")
    e(f"v_lshl_add_u32 v9, v{V_HH}, 8, v9")
    e(f"v_add_u32 v9, s{T0}, v9")
    e.wait(vm="kv")
    e("s_barrier")
    for i in range(10): e(f"ds_read_b128 {v(KR+4*i,4)}, v8 offset:{i*1024}", "k")
    e("s_mov_b32 exec_lo, 0xffff"); e("s_mov_b32 exec_hi, 0xffff")
    for i in range(20): e(f"ds_read_b128 {v(VR+4*i,4)}, v9 offset:{16384+i*512}", "vv")
    e("s_mov_b64 exec, -1")
    e.wait(lg="all")
    for u in range(2):
        q = QR + 4 * u
        L, D = u, 8 + u
        order = [7, 6, 5, 4, 3, 2, 1] if u == 0 else [8, 7, 6, 5, 4, 3, 2]
        chk = {7: 1, 5: 2, 3: 3, 1: 4}
        wk = lambda n: WK + 16 * (n % 3)
        for i in range(16): e(f"v_mov_b32 v{NEG+i}, s{S_EDGE}")
        mfma(e, SM, KR + 4 * D, q, None)
        mfma(e, NEG, KR + 4 * L, q, NEG)
        mfma(e, wk(0), KR + 4 * order[0], q, None)
        mfma(e, wk(1), KR + 4 * order[1], q, None)
        for r in range(16): e(f"v_cndmask_b32 v{SM+r}, v{NEG+r}, v{SM+r}, {s(S_MASK+2*r,2)}")
        e(f"v_max3_f32 v{VM}, v{SM}, v{SM+1}, v{SM+2}")
        e(f"v_max3_f32 v{VT}, v{SM+3}, v{SM+4}, v{SM+5}")
        for i in range(6, 14, 4):
            e(f"v_max3_f32 v{VM}, v{VM}, v{SM+i}, v{SM+i+1}")
            e(f"v_max3_f32 v{VT}, v{VT}, v{SM+i+2}, v{SM+i+3}")
        e(f"v_max3_f32 v{VM}, v{VM}, v{SM+14}, v{SM+15}")
        l1 = e.newlabel("A2_p1")
        for n, b in enumerate(order):
            if b in chk:
                e(f"s_cmp_lt_u32 s{S_NV}, {chk[b]}")
                e(f"s_cbranch_scc1 {l1}")
            if n + 2 < len(order): mfma(e, wk(n + 2), KR + 4 * order[n + 2], q, None)
            for i in range(0, 16, 4):
                e(f"v_max3_f32 v{VM}, v{VM}, v{wk(n)+i}, v{wk(n)+i+1}")
                e(f"v_max3_f32 v{VT}, v{VT}, v{wk(n)+i+2}, v{wk(n)+i+3}")
        e.label(l1)
        e(f"v_max_f32 v{VM}, v{VM}, v{VT}")
        e(f"v_mov_b32 v{VT}, v{VM}")
        e(f"v_permlane32_swap_b32 v{VM}, v{VT}")
        e(f"v_max_f32 v{VM}, v{VM}, v{VT}")
        for i in range(16): e(f"v_sub_f32 v{NEG+i}, 0, v{VM}")
        mfma(e, wk(0), KR + 4 * order[0], q, NEG)
        mfma(e, wk(1), KR + 4 * order[1], q, NEG)
        for i in range(16): e(f"v_sub_f32 v{SM+i}, v{SM+i}, v{VM}")
        for i in range(16): e(f"v_exp_f32 v{SM+i}, v{SM+i}")
        for i in range(8): e(f"v_cvt_pk_bf16_f32 v{PL+i}, v{SM+2*i}, v{SM+2*i+1}")
        for i in range(8): e(f"v_and_b32 v{SM+i}, v{PL+i}, v{MSK+i}")
        for i in range(8): e(f"v_xor_b32 v{PL+i}, v{PL+i}, v{SM+i}")
        mfma(e, O, VR + 8 * D, SM, None)
        mfma(e, O, VR + 8 * D + 4, SM + 4, O)
        mfma(e, O, VR + 8 * L, PL, O)
        mfma(e, O, VR + 8 * L + 4, PL + 4, O)
        l2 = e.newlabel("A2_p2")
        for n, b in enumerate(order):
            if b in chk:
                e(f"s_cmp_lt_u32 s{S_NV}, {chk[b]}")
                e(f"s_cbranch_scc1 {l2}")
            if n + 2 < len(order): mfma(e, wk(n + 2), KR + 4 * order[n + 2], q, NEG)
            w = wk(n)
            for i in range(16): e(f"v_exp_f32 v{w+i}, v{w+i}")
            for i in range(8): e(f"v_cvt_pk_bf16_f32 v{w+i}, v{w+2*i}, v{w+2*i+1}")
            mfma(e, O, VR + 8 * b, w, O)
            mfma(e, O, VR + 8 * b + 4, w + 4, O)
        e.label(l2)
        e._nop(12)
        e(f"v_rcp_f32 v5, v{O+8}")
        for i in range(8): e(f"v_mul_f32 v{O+i}, v5, v{O+i}")
        for i in range(4): e(f"v_cvt_pk_bf16_f32 v{PL+i}, v{O+2*i}, v{O+2*i+1}")
        e(f"s_lshl_b32 s{T0}, s{S_XCD}, 3")
        e(f"s_lshl_b32 s{T0+1}, s{S_W}, 1")
        e(f"s_add_u32 s{T0}, s{T0}, s{T0+1}")
        e(f"s_add_u32 s{T0}, s{T0}, {u}")
        e(f"s_lshl_b32 s{T0}, s{T0}, 5")
        e(f"s_add_u32 s{T0}, s{T0}, s{S_J}")
        e(f"s_lshl_b32 s{T0}, s{T0}, 10")
        e(f"s_add_u32 s{T0}, s{T0}, {OF}")
        e(f"buffer_store_dwordx4 {v(PL,4)}, v{V_L16}, {s(R_WS,4)}, s{T0} offen", "st")

def two_role_kernel(e, name, fb, fa):
    prologue(e, name, 512)
    e(f"s_cmp_ge_u32 s2, 256")
    e(f"s_cbranch_scc1 {name}_A")
    fb()
    e("s_endpgm")
    e.label(f"{name}_A")
    e.hist = []; e.vm = []; e.lg = []
    fa()
    epilogue(e, name)

def gen(extra_empty=0):
    e = Em()
    hdr = open("gated_mix__sliding_block__mixer_s_mlp__prompt.s.ref").read().split("; Override")[0]
    e.raw(hdr.rstrip())
    for n, g in (("k1_kernel", 512), ("k2_kernel", 512), ("k3_kernel", 512), ("k4_kernel", 256)):
        e.raw(f"; @launch kernel={n} grid=({g},1,1) block=(256,1,1) lds=81920")
    for i in range(extra_empty):
        e.raw(f"; @launch kernel=nop_kernel grid=(256,1,1) block=(256,1,1) lds=0")
    e.raw('.amdgcn_target "amdgcn-amd-amdhsa--gfx950"')
    e.raw(".text")
    two_role_kernel(e, "k1_kernel", lambda: phase_B1(e), lambda: phase_A1(e))
    two_role_kernel(e, "k2_kernel", lambda: phase_G64(e, "B2"), lambda: phase_A2(e))
    two_role_kernel(e, "k3_kernel", lambda: phase_B3(e, "k3_kernel"), lambda: phase_G64(e, "A3"))
    prologue(e, "k4_kernel", 256); phase_B4(e); epilogue(e, "k4_kernel")
    names = ["k1_kernel", "k2_kernel", "k3_kernel", "k4_kernel"]
    if extra_empty:
        e.raw(".globl nop_kernel"); e.raw(".p2align 8"); e.raw(".type nop_kernel,@function"); e.label("nop_kernel"); e("s_endpgm")
        names.append("nop_kernel")
    e.raw('.section .rodata,"a"')
    for n in names: e.raw(kd(n, 256, 96))
    return e.text()

if __name__ == "__main__":
    out = sys.argv[1] if len(sys.argv) > 1 else "gated_mix__sliding_block__mixer_s_mlp__prompt.s"
    open(out, "w").write(gen(int(sys.argv[2]) if len(sys.argv) > 2 else 0))
```
